```python
import torch

def _softmax(x, axis=-1):
    return torch.softmax(x, dim=axis)
def _gelu(x):
    return torch.nn.functional.gelu(x, approximate="tanh")
def _silu(x):
    return torch.nn.functional.silu(x)
def _sigmoid(x):
    return torch.sigmoid(x)
def _layernorm(x, axis=-1, eps=1e-5):
    m = x.mean(dim=axis, keepdim=True)
    v = x.var(dim=axis, keepdim=True, unbiased=False)
    return (x - m) / torch.sqrt(v + eps)
def _scatter_add(tgt, idx, src, axis=0):
    return tgt.clone().index_add_(axis, idx, src)
def _segment_sum(src, seg, n):
    out = torch.zeros((n,) + src.shape[1:], dtype=src.dtype)
    return out.index_add_(0, seg, src)
def _pad(x, pw):
    flat = tuple(v for pair in reversed(pw) for v in pair)
    return torch.nn.functional.pad(x, flat)

kernel_name = 'sequential_preLN__ssm_conv_s4d__moe_arch_mod__prompt'

def setup_inputs():

    _w = (lambda a: (lambda t: t.to(torch.bfloat16) if t.is_floating_point() else t)(torch.as_tensor(a)))
    def _A_setup():
        Bsz, L, D, N = 1, 2048, 576, 128
        return {
            "u": _w((lambda *s: torch.randn(*s, dtype=torch.bfloat16) * 0.2)(Bsz, L, D)),
            "log_A_real": _w((lambda *s: torch.randn(*s, dtype=torch.bfloat16) * 6.4)(D, N) * 0.5),
            "A_imag": _w((lambda *s: torch.randn(*s, dtype=torch.bfloat16) * 0.2)(D, N) * 3.14),
            "C_real": _w((lambda *s: torch.randn(*s, dtype=torch.bfloat16) * 0.2)(D, N) / N ** 0.5),
            "C_imag": _w((lambda *s: torch.randn(*s, dtype=torch.bfloat16) * 0.2)(D, N) / N ** 0.5),
            "log_dt": _w((lambda *s: torch.randn(*s, dtype=torch.bfloat16) * 0.2)(D) * 0.5 - 4.0),
            "D_skip": _w((lambda *s: torch.randn(*s, dtype=torch.bfloat16) * 0.2)(D)),
        }
    _A_in = _A_setup()

    def _B_setup():
        B, S, D, F, C = 1, 2048, 576, 4608, 8
        return {
            "x": _w((lambda *s: torch.randn(*s, dtype=torch.bfloat16) * 0.2)(B, S, D)),
            "w_r": _w((lambda *s: torch.randn(*s, dtype=torch.bfloat16) * 0.2)(D)),
            "w_gate": _w((lambda *s: torch.randn(*s, dtype=torch.bfloat16) * 0.2)(D, F)),
            "w_up": _w((lambda *s: torch.randn(*s, dtype=torch.bfloat16) * 0.2)(D, F)),
            "w_down": _w((lambda *s: torch.randn(*s, dtype=torch.bfloat16) * 0.2)(F, D)),
        }
    _B_in = _B_setup()

    return {
        "A_u": _A_in["u"],
        "A_log_A_real": _A_in["log_A_real"],
        "A_A_imag": _A_in["A_imag"],
        "A_C_real": _A_in["C_real"],
        "A_C_imag": _A_in["C_imag"],
        "A_log_dt": _A_in["log_dt"],
        "A_D_skip": _A_in["D_skip"],
        "B_x": _B_in["x"],
        "B_w_r": _B_in["w_r"],
        "B_w_gate": _B_in["w_gate"],
        "B_w_up": _B_in["w_up"],
        "B_w_down": _B_in["w_down"],
    }

def reference(A_u, A_log_A_real, A_A_imag, A_C_real, A_C_imag, A_log_dt, A_D_skip, B_x, B_w_r, B_w_gate, B_w_up, B_w_down):
    def _A_ref(u, log_A_real, A_imag, C_real, C_imag, log_dt, D_skip):
        L = u.shape[1]
        dt = torch.exp(log_dt)
        A = -torch.exp(log_A_real) + 1j * A_imag
        C = (C_real + 1j * C_imag) * dt[:, None]
        pos = (lambda x, dt: x.to(dt))(torch.arange(L), log_dt.dtype)
        P = torch.exp((A * dt[:, None])[:, :, None] * pos[None, None, :])
        K = 2.0 * torch.einsum("dn,dnl->dl", C, P).real
        L2 = 2 * L
        u_t = (lambda x, *d: x.permute(*d))(u, 0, 2, 1)
        Kf = (lambda x, *a, **k: torch.fft.rfft(x.float(), *a, **k))(K, L2)
        Uf = (lambda x, *a, **k: torch.fft.rfft(x.float(), *a, **k))(u_t, L2)
        y = (lambda x, *a, **k: torch.fft.irfft(x, *a, **k).to(torch.bfloat16))(Uf * Kf[None, :, :], L2)[:, :, :L]
        y = (lambda x, *d: x.permute(*d))(y, 0, 2, 1)
        return y + u * D_skip[None, None, :]

    def _B_ref(x, w_r, w_gate, w_up, w_down):
        B, S, D = x.shape
        C = 8
        r = x @ w_r
        idx = torch.argsort(-r, axis=-1)[:, :C]
        idx_e = (lambda x, n, axis: torch.repeat_interleave(x, n, dim=axis))(idx.reshape(B, C, 1), D, axis=2)
        x_sel = (lambda x, i, axis: torch.take_along_dim(x, i, dim=axis))(x, idx_e, axis=1)
        g = _silu(x_sel @ w_gate)
        u = x_sel @ w_up
        y = (g * u) @ w_down
        r_sel = _sigmoid((lambda x, i, axis: torch.take_along_dim(x, i, dim=axis))(r, idx, axis=1))
        y = y * r_sel.reshape(B, C, 1)
        b_off = (torch.arange(B) * S).reshape(B, 1)
        flat_idx = (idx + b_off).reshape(B * C)
        zero = (x * 0.0).reshape(B * S, D)
        upd = _scatter_add(zero, flat_idx, y.reshape(B * C, D), axis=0)
        return x + upd.reshape(B, S, D)

    x = A_u
    h = x + _A_ref(_layernorm(x, axis=-1), A_log_A_real, A_A_imag, A_C_real, A_C_imag, A_log_dt, A_D_skip)
    h2 = h + _B_ref(_layernorm(h, axis=-1), B_w_r, B_w_gate, B_w_up, B_w_down)
    return h2
```

```python
import sys, re
src = open(sys.argv[1]).read(); pre = sys.argv[2]
MUL = 4
SOFF = 0x8000000
lines = src.split("\n")
kn = [re.search(r"kernel=(\w+)", l).group(1) for l in lines if l.startswith("; @launch")]
idx = max(i for i, l in enumerate(lines) if l.startswith("; @launch"))
def stamp(i):
    return """    s_memrealtime s[90:91]
    s_cmp_lg_u32 s2, 0
    s_cbranch_scc1 STSK%d
    s_load_dwordx2 s[92:93], s[0:1], 112
    s_waitcnt lgkmcnt(0)
    s_add_u32 s92, s92, %d
    s_addc_u32 s93, s93, 0
    v_mov_b32 v1, 0
    v_mov_b32 v2, s90
    v_mov_b32 v3, s91
    global_store_dwordx2 v1, v[2:3], s[92:93] sc1
STSK%d:""" % (i, SOFF + 64 * i, i)
def mk(a, b):
    L = []
    for j, l in enumerate(lines):
        L.append(l)
        if j == idx: L.append("; @launch kernel=sp_kernel grid=(1,1,1) block=(64,1,1) lds=0")
        for i, k in enumerate(kn):
            if l.startswith(k + ":"): L.append(stamp(i))
    n = len(kn)
    body = """
.text
.globl sp_kernel
.p2align 8
.type sp_kernel,@function
sp_kernel:
    s_memrealtime s[10:11]
    s_cmp_lg_u32 s2, 0
    s_cbranch_scc1 SPEND
    s_load_dwordx2 s[4:5], s[0:1], 112
    s_waitcnt lgkmcnt(0)
    s_add_u32 s4, s4, %d
    s_addc_u32 s5, s5, 0
    s_load_dword s6, s[4:5], %d
    s_load_dword s7, s[4:5], %d
    s_waitcnt lgkmcnt(0)
""" % (SOFF, 64 * min(a, n - 1), 64 * min(b, n - 1))
    if b == n: body += "    s_mov_b32 s7, s10\n"
    body += """    s_sub_u32 s6, s7, s6
    s_min_u32 s6, s6, 10000
    s_mul_i32 s6, s6, %d
SPL:
    s_memrealtime s[8:9]
    s_waitcnt lgkmcnt(0)
    s_sub_u32 s8, s8, s10
    s_cmp_lt_u32 s8, s6
    s_cbranch_scc1 SPL
SPEND:
    s_endpgm
.section .rodata,"a"
.p2align 6
.amdhsa_kernel sp_kernel
  .amdhsa_next_free_vgpr 32
  .amdhsa_next_free_sgpr 32
  .amdhsa_accum_offset 32
  .amdhsa_group_segment_fixed_size 0
  .amdhsa_kernarg_size 120
  .amdhsa_user_sgpr_count 2
  .amdhsa_user_sgpr_kernarg_segment_ptr 1
  .amdhsa_system_sgpr_workgroup_id_x 1
.end_amdhsa_kernel
.text
""" % MUL
    return "\n".join(L) + body
n = len(kn)
open(pre + "_0.s", "w").write(mk(0, 0))
for i in range(n):
    open(pre + "_%d.s" % (i + 1), "w").write(mk(i, i + 1))
```

```python
import sys, re
src = open(sys.argv[1]).read(); out = sys.argv[2]; idx = int(sys.argv[3]); lo = int(sys.argv[4]); hi = int(sys.argv[5]); mode = sys.argv[6]
MUL = 4 if idx >= 0 else 0
idx = max(idx, 0)
lines = src.split("\n")
k = max(i for i, l in enumerate(lines) if l.startswith("; @launch"))
lines.insert(k + 1, "; @launch kernel=sp_kernel grid=(1,1,1) block=(64,1,1) lds=0")
b = """
.text
.globl sp_kernel
.p2align 8
.type sp_kernel,@function
sp_kernel:
    s_cmp_lg_u32 s2, 0
    s_cbranch_scc1 SPEND
    s_load_dwordx2 s[4:5], s[0:1], 112
    s_waitcnt lgkmcnt(0)
    s_add_u32 s4, s4, 0x8000000
    s_addc_u32 s5, s5, 0
"""
for j in range(4):
    b += "    v_add_u32 v1, %d, v0\n    v_min_u32 v2, 247, v1\n    v_lshlrev_b32 v2, 7, v2\n    global_load_dword v%d, v2, s[4:5]\n" % (64 * j, 8 + j)
    b += "    v_max_u32 v1, %d, v1\n    v_min_u32 v1, %d, v1\n    v_lshlrev_b32 v1, 7, v1\n    global_load_dword v%d, v1, s[4:5] offset:%d\n" % (lo, hi - 1, 12 + j, 4 * idx)
op = "v_max_u32" if mode == "max" else "v_min_u32"
b += "    s_waitcnt vmcnt(0)\n    v_min_u32 v8, v8, v9\n    v_min_u32 v10, v10, v11\n    v_min_u32 v8, v8, v10\n"
b += "    %s v12, v12, v13\n    %s v14, v14, v15\n    %s v12, v12, v14\n" % (op, op, op)
b += "    s_mov_b32 s6, -1\n    s_mov_b32 s7, %s\n" % ("0" if mode == "max" else "-1")
for l in range(64):
    b += "    v_readlane_b32 s8, v8, %d\n    v_readlane_b32 s9, v12, %d\n    s_nop 1\n    s_min_u32 s6, s6, s8\n    s_%s_u32 s7, s7, s9\n" % (l, l, mode)
b += """    s_memrealtime s[10:11]
    s_waitcnt lgkmcnt(0)
    s_sub_u32 s6, s7, s6
    s_min_u32 s6, s6, 5000
    s_mul_i32 s6, s6, %d
SPL:
    s_memrealtime s[8:9]
    s_waitcnt lgkmcnt(0)
    s_sub_u32 s8, s8, s10
    s_cmp_lt_u32 s8, s6
    s_cbranch_scc1 SPL
SPEND:
    s_endpgm
.section .rodata,"a"
.p2align 6
.amdhsa_kernel sp_kernel
  .amdhsa_next_free_vgpr 32
  .amdhsa_next_free_sgpr 32
  .amdhsa_accum_offset 32
  .amdhsa_group_segment_fixed_size 0
  .amdhsa_kernarg_size 120
  .amdhsa_user_sgpr_count 2
  .amdhsa_user_sgpr_kernarg_segment_ptr 1
  .amdhsa_system_sgpr_workgroup_id_x 1
.end_amdhsa_kernel
""" % MUL
open(out, "w").write("\n".join(lines) + b)
```
